```python
import torch

def _softmax(x, axis=-1):
    return torch.softmax(x, dim=axis)
def _gelu(x):
    return torch.nn.functional.gelu(x, approximate="tanh")
def _silu(x):
    return torch.nn.functional.silu(x)
def _sigmoid(x):
    return torch.sigmoid(x)
def _layernorm(x, axis=-1, eps=1e-5):
    m = x.mean(dim=axis, keepdim=True)
    v = x.var(dim=axis, keepdim=True, unbiased=False)
    return (x - m) / torch.sqrt(v + eps)
def _scatter_add(tgt, idx, src, axis=0):
    return tgt.clone().index_add_(axis, idx, src)
def _segment_sum(src, seg, n):
    out = torch.zeros((n,) + src.shape[1:], dtype=src.dtype)
    return out.index_add_(0, seg, src)
def _pad(x, pw):
    flat = tuple(v for pair in reversed(pw) for v in pair)
    return torch.nn.functional.pad(x, flat)

kernel_name = 'gated_mix__compressed_kv_cla__dense_activation_mish__prompt'

def setup_inputs():

    _w = (lambda a: (lambda t: t.to(torch.bfloat16) if t.is_floating_point() else t)(torch.as_tensor(a)))
    def _A_setup():
        B, H, Sq, Sk, D, M = 1, 32, 2048, 2048, 128, 512
        Dc = 4 * D
        return {
            "x": _w((lambda *s: torch.randn(*s, dtype=torch.bfloat16) * 0.05)(B, Sq, M)),
            "c_kv": _w((lambda *s: torch.randn(*s, dtype=torch.bfloat16) * 0.2)(B, Sk, Dc)),
            "w_q": _w((lambda *s: torch.randn(*s, dtype=torch.bfloat16) * 12.8)(M, H, D) * (M ** -0.5)),
            "w_uk": _w((lambda *s: torch.randn(*s, dtype=torch.bfloat16) * 12.8)(Dc, H, D) * (Dc ** -0.5)),
            "w_uv": _w((lambda *s: torch.randn(*s, dtype=torch.bfloat16) * 0.2)(Dc, H, D) * (Dc ** -0.5)),
            "w_o": _w((lambda *s: torch.randn(*s, dtype=torch.bfloat16) * 0.2)(H, D, M) * ((H * D) ** -0.5)),
        }
    _A_in = _A_setup()

    def _B_setup():
        B, S, D, F = 1, 2048, 512, 1792
        return {
            "x": _w((lambda *s: torch.randn(*s, dtype=torch.bfloat16) * 0.05)(B, S, D)),
            "w1": _w((lambda *s: torch.randn(*s, dtype=torch.bfloat16) * 6.4)(D, F) * (D ** -0.5)),
            "b1": _w((lambda *s: torch.randn(*s, dtype=torch.bfloat16) * 0.05)(F)),
            "w2": _w((lambda *s: torch.randn(*s, dtype=torch.bfloat16) * 0.05)(F, D) * (F ** -0.5)),
        }
    _B_in = _B_setup()

    return {
        "A_x": _A_in["x"],
        "A_c_kv": _A_in["c_kv"],
        "A_w_q": _A_in["w_q"],
        "A_w_uk": _A_in["w_uk"],
        "A_w_uv": _A_in["w_uv"],
        "A_w_o": _A_in["w_o"],
        "B_x": _B_in["x"],
        "B_w1": _B_in["w1"],
        "B_b1": _B_in["b1"],
        "B_w2": _B_in["w2"],
        "gate_w": _w((lambda *s: torch.randn(*s, dtype=torch.bfloat16) * 0.05)(512) * 16.0),
    }

def reference(A_x, A_c_kv, A_w_q, A_w_uk, A_w_uv, A_w_o, B_x, B_w1, B_b1, B_w2, gate_w):
    def _A_ref(x, c_kv, w_q, w_uk, w_uv, w_o):
        B, Sq, M = x.shape[0], x.shape[1], x.shape[2]
        Sk = c_kv.shape[1]
        H, D = w_q.shape[1], w_q.shape[2]
        q = torch.einsum("bqm,mhd->bhqd", x, w_q)
        k = torch.einsum("bkc,chd->bhkd", c_kv, w_uk)
        v = torch.einsum("bkc,chd->bhkd", c_kv, w_uv)
        scores = torch.einsum("bhqd,bhkd->bhqk", q, k) * (D ** -0.5)
        off = Sk - Sq
        qi = torch.arange(Sq)[:, None]
        kj = torch.arange(Sk)[None, :]
        cmask = kj <= (qi + off)
        scores = torch.where(cmask[None, None], scores, -1e9)
        p = _softmax(scores, axis=-1)
        ctx = torch.einsum("bhqk,bhkd->bhqd", p, v)
        return torch.einsum("bhqd,hdm->bqm", ctx, w_o)

    def _B_ref(x, w1, b1, w2):
        h = torch.einsum("bsd,df->bsf", x, w1) + b1
        sp = torch.log1p(torch.exp(-torch.abs(h))) + torch.where(h > 0, h, torch.zeros_like(h))
        act = h * torch.tanh(sp)
        return torch.einsum("bsf,fd->bsd", act, w2)

    x = A_x
    g = _sigmoid((x * gate_w).sum(-1, keepdims=True))
    a = _A_ref(x, A_c_kv, A_w_q, A_w_uk, A_w_uv, A_w_o)
    b = _B_ref(x, B_w1, B_b1, B_w2)
    return g * a + (1 - g) * b
```

```python
import re

def vr(base, n=1, t='v'):
    return f"{t}{base}" if n == 1 else f"{t}[{base}:{base+n-1}]"
def ar(base, n=1):
    return vr(base, n, 'a')
def sr(base, n=1):
    return vr(base, n, 's')

class Reg:
    def __init__(self, t, b): self.t, self.b = t, b
    def __call__(self, n=1, off=0): return vr(self.b + off, n, self.t)
    def __add__(self, k): return Reg(self.t, self.b + k)
    def __repr__(self): return f"{self.t}{self.b}"
def V(b): return Reg('v', b)
def A(b): return Reg('a', b)

def mfma(d, a, b, c=None):
    cs = d(4) if c is None else ("0" if c == 0 else c(4))
    return f"v_mfma_f32_16x16x32_bf16 {d(4)}, {a(4)}, {b(4)}, {cs}"

def weave(mf, fill):
    out = list(fill.get(-1, []))
    for i, m in enumerate(mf):
        out.append(m)
        out += fill.get(i, [])
    extra = [k for k in fill if k >= len(mf)]
    for k in sorted(extra):
        out += fill[k]
    return out

def put(fill, idx, *ins):
    fill.setdefault(idx, []).extend(ins)

def spread(fill, items, lo, hi):
    n = len(items)
    if n == 0: return
    for k, it in enumerate(items):
        idx = lo + (k * (hi - lo + 1)) // n
        if isinstance(it, str): put(fill, idx, it)
        else: put(fill, idx, *it)

_reg_re = re.compile(r'\b([vas])(\d+)\b|\b([vas])\[(\d+):(\d+)\]')
def regs_of(op):
    s = set()
    for m in _reg_re.finditer(op):
        if m.group(1): s.add((m.group(1), int(m.group(2))))
        else:
            for r in range(int(m.group(4)), int(m.group(5)) + 1): s.add((m.group(3), r))
    for w in ('vcc', 'exec', 'm0'):
        if re.search(r'\b' + w + r'(_lo|_hi)?\b', op): s.add((w, 0))
    return s

TRANS = ('v_exp_f32', 'v_log_f32', 'v_rcp_f32', 'v_rsq_f32', 'v_sqrt_f32')
class Ins:
    def __init__(self, text):
        self.text = text
        t = text.split(';')[0].strip()
        self.label = t.endswith(':')
        self.op = t.split()[0] if t else ''
        rest = t[len(self.op):].strip()
        ops = [o.strip() for o in rest.split(',')] if rest else []
        self.ops = ops
        op = self.op
        self.kind = 'other'
        self.w, self.r = set(), set()
        self.states = 1
        self.srcc = set(); self.srcab = set(); self.stdata = set()
        if self.label or not op or op.startswith('.'):
            self.states = 0; self.kind = 'none'; return
        if op == 's_nop':
            self.states = int(ops[0], 0) + 1; self.kind = 'salu'; return
        if op.startswith('v_mfma'):
            self.kind = 'mfma'
            self.w = regs_of(ops[0]); self.srcab = regs_of(ops[1]) | regs_of(ops[2]); self.srcc = regs_of(ops[3])
            self.r = self.srcab | self.srcc
        elif op.startswith('v_'):
            self.kind = 'valu'
            if op.startswith('v_cmp'):
                self.w = regs_of(ops[0]); self.r = set().union(*[regs_of(o) for o in ops[1:]])
            elif op.startswith('v_permlane') and 'swap' in op:
                self.w = regs_of(ops[0]) | regs_of(ops[1]); self.r = set(self.w)
            else:
                self.w = regs_of(ops[0]); self.r = set().union(*[regs_of(o) for o in ops[1:]]) if len(ops) > 1 else set()
                if op.startswith(('v_fmac', 'v_dot2c')): self.r |= self.w
        elif op.startswith('ds_read'):
            self.kind = 'ds'; self.w = regs_of(ops[0]); self.r = regs_of(ops[1])
        elif op.startswith('ds_write'):
            self.kind = 'ds'; self.r = set().union(*[regs_of(o) for o in ops])
        elif op.startswith('buffer_') or op.startswith('global_'):
            self.kind = 'vmem'
            if op in ('buffer_inv', 'buffer_wbl2'): return
            if ' lds' in t or op.startswith('global_load_lds'):
                self.r = set().union(*[regs_of(o) for o in ops]) | {('m0', 0)}
                self.dma = True
            elif 'load' in op:
                self.w = regs_of(ops[0]); self.r = set().union(*[regs_of(o) for o in ops[1:]])
            else:
                self.r = set().union(*[regs_of(o) for o in ops])
                if op.endswith(('x3', 'x4')): self.stdata = regs_of(ops[0])
        elif op.startswith('s_'):
            self.kind = 'salu'
            if op.startswith(('s_cmp', 's_cbranch', 's_branch', 's_waitcnt', 's_barrier', 's_endpgm', 's_setprio', 's_sleep', 's_bitcmp')):
                self.r = set().union(*[regs_of(o) for o in ops]) if ops else set()
            else:
                self.w = regs_of(ops[0]); self.r = set().union(*[regs_of(o) for o in ops[1:]]) if len(ops) > 1 else set()

def check(lines, name=""):
    ins = [Ins(l) for l in lines]
    ins = [i for i in ins if i.kind != 'none']
    probs = []
    for j, c in enumerate(ins):
        dist = 0
        for k in range(j - 1, max(-1, j - 14), -1):
            p = ins[k]
            need = 0; why = ''
            vw = {r for r in p.w if r[0] in 'va'}
            sw = {r for r in p.w if r[0] in ('s', 'vcc')}
            if p.kind == 'valu':
                if c.kind == 'mfma' and vw & c.r: need, why = 2, 'valu->mfma'
                if p.op.startswith(TRANS) and c.kind == 'valu' and vw & c.r and need < 1: need, why = 1, 'trans->valu'
                if c.kind == 'valu' and c.op.startswith(('v_readfirstlane', 'v_readlane')) and vw & c.r and need < 1: need, why = 1, 'valu->readlane'
                if c.kind == 'valu' and c.op.startswith('v_permlane') and vw & c.r: need, why = 2, 'valu->permlane'
                if c.kind == 'valu' and ('dpp' in c.text or 'row_' in c.text) and vw & c.r: need, why = 2, 'valu->dpp'
                if c.kind == 'valu' and sw & c.r: need, why = max(need, 2), 'valu sgpr->valu'
                if c.kind == 'vmem' and sw & c.r: need, why = 5, 'valu sgpr->vmem'
                if ('exec', 0) in p.w and c.kind == 'mfma': need, why = 4, 'valu exec->mfma'
            if p.kind == 'mfma':
                if c.kind == 'valu' and p.w & (c.r | c.w): need, why = 8, 'mfma D->valu'
                if c.kind in ('ds', 'vmem') and p.w & (c.r | c.w): need, why = 8, 'mfma D->mem'
                if c.kind == 'mfma':
                    if p.w & c.srcab: need, why = 8, 'mfma D->AB'
                    elif p.w & c.srcc and p.w != c.srcc: need, why = 6, 'mfma D->C overlap'
                if c.kind == 'valu' and p.srcc & c.w and need < 3: need, why = 3, 'mfma C WAR'
            if p.kind == 'salu' and ('m0', 0) in p.w and c.kind == 'vmem' and ('m0', 0) in c.r: need, why = 1, 'm0->dma'
            if p.stdata:
                if c.kind == 'valu' and p.stdata & c.w: need, why = max(need, 2), 'store data WAR'
                elif p.stdata & c.w: need, why = max(need, 1), 'store data WAR'
            if need > dist:
                probs.append(f"[{name}] {why}: need {need} have {dist}:\n    {p.text.strip()}\n    {c.text.strip()}")
            dist += p.states
            if dist >= 12: break
    return probs
```

```python
import sys
from asmlib import *

NAME = "gated_mix__compressed_kv_cla__dense_activation_mish__prompt"

S_X, S_CKV, S_WQ, S_WKV, S_WO, S_W1, S_B1, S_W2, S_GATE, S_OUT, S_WS, S_DBG = [8 + 4 * k for k in range(12)]
sW, sH, sI = 60, 61, 62
sLW = 63
sA0, sA1, sA2, sA3 = 64, 65, 66, 67
sCNT = 68
sT0, sT1, sT2, sT3 = 69, 70, 71, 72
sRG = 73
WS_BYTES = 64 << 20
Z_BASE = 32 << 20
Z_RG = 184 * 4096
OOB = 0x40000000
LOG2E = 0x3fb8aa3b

vLANE, vL16 = 1, 2
vOFFW, vOFFC, vOFF1 = 4, 8, 12
vADW, vADC, vAD1 = 16, 24, 26
vT = 30

def srd(n): return sr(n, 4)

STAMPS = False
_nst = [0]
def stamp():
    if not STAMPS: return []
    n = _nst[0]; _nst[0] += 1
    assert n < 9
    return [f"s_memrealtime {sr(78+2*n,2)}"]
def stamp_flush():
    if not STAMPS: return []
    n = _nst[0]; _nst[0] = 0
    L = ["s_waitcnt vmcnt(0) lgkmcnt(0)", f"s_memrealtime {sr(78+2*n,2)}", "s_waitcnt lgkmcnt(0)",
         f"s_lshl_b32 s{sT0}, s2, 2", f"s_add_u32 s{sT0}, s{sT0}, s{sW}", f"s_lshl_b32 s{sT0}, s{sT0}, 6",
         f"s_add_u32 s{sT0}, s{sT0}, {60<<20}", "v_mov_b32 v4, 0"]
    for k in range(n + 1):
        L += [f"v_mov_b32 v5, s{78+2*k}", f"buffer_store_dword v5, v4, {srd(S_WS)}, s{sT0} offen offset:{4*k}"]
    return L

def setup_common(tag):
    L = []
    a = L.append
    a("s_cmp_ge_u32 s2, 256")
    a(f"s_cbranch_scc0 {tag}_go")
    a("s_endpgm")
    a(f"{tag}_go:")
    L += stamp()
    ptrs = [(S_X, 0), (S_CKV, 8), (S_WQ, 16), (56, 24), (58, 32), (S_WO, 40), (S_W1, 56), (S_B1, 64),
            (S_W2, 72), (S_GATE, 80), (S_OUT, 88), (S_DBG, 96), (S_WS, 104)]
    for r, off in ptrs:
        a(f"s_load_dwordx2 {sr(r,2)}, s[0:1], {off}")
    a(f"v_lshrrev_b32 v3, 6, v0")
    a(f"v_and_b32 v{vLANE}, 63, v0")
    a(f"v_readfirstlane_b32 s{sW}, v3")
    a(f"v_lshlrev_b32 v{vL16}, 4, v{vLANE}")
    sizes = {S_X: 2 << 20, S_CKV: 2 << 20, S_WQ: 4 << 20, S_WKV: 4 << 20, S_WO: 4 << 20, S_W1: 512 * 1792 * 2,
             S_B1: 1792 * 2, S_W2: 512 * 1792 * 2, S_GATE: 1024, S_OUT: 2 << 20, S_WS: WS_BYTES, S_DBG: 256}
    for r, n in sizes.items():
        a(f"s_mov_b32 s{r+2}, {n}")
        a(f"s_mov_b32 s{r+3}, 0x20000")
    a(f"s_and_b32 s{sT0}, s2, 7")
    a(f"s_lshr_b32 s{sT1}, s2, 3")
    a(f"s_and_b32 s{sH}, s{sT1}, 3")
    a(f"s_lshl_b32 s{sT0}, s{sT0}, 2")
    a(f"s_add_u32 s{sH}, s{sH}, s{sT0}")
    a(f"s_lshr_b32 s{sI}, s{sT1}, 2")
    a(f"s_lshl_b32 s{sLW}, s{sW}, 13")
    a("s_waitcnt lgkmcnt(0)")
    a(f"s_cmp_ge_u32 s{sW}, 2")
    a(f"s_cselect_b32 s{S_WKV}, s58, s56")
    a(f"s_cselect_b32 s{S_WKV+1}, s59, s57")
    return L

def setup_gemm_dma_offsets():
    L = []; a = L.append
    t0, t1, t2, t3 = vT, vT + 1, vT + 2, vT + 3
    a(f"v_lshrrev_b32 v{t0}, 4, v{vLANE}")
    a(f"v_and_b32 v{t1}, 15, v{vLANE}")
    a(f"v_lshlrev_b32 v{t2}, 1, v{t0}")
    a(f"v_xor_b32 v{t1}, v{t1}, v{t2}")
    a(f"v_lshlrev_b32 v{t1}, 4, v{t1}")
    a(f"v_lshl_add_u32 v{t1}, v{t0}, 13, v{t1}")
    for j in range(4):
        if (j >> 1) & 1:
            a(f"v_xor_b32 v{vOFFW+j}, 128, v{t1}")
            a(f"v_add_u32 v{vOFFW+j}, {j*(32768-1024)}, v{vOFFW+j}")
        else:
            a(f"v_add_u32 v{vOFFW+j}, {j*(32768-1024)}, v{t1}")
    a(f"v_and_b32 v{t1}, 7, v{vLANE}")
    a(f"v_xor_b32 v{t2}, v{t1}, v{t0}")
    a(f"v_lshlrev_b32 v{t2}, 4, v{t2}")
    a(f"v_lshrrev_b32 v{t3}, 3, v{vLANE}")
    a(f"v_lshl_add_u32 v{t2}, v{t3}, 10, v{t2}")
    for j in range(4):
        if j & 1:
            a(f"v_xor_b32 v{vOFFC+j}, 64, v{t2}")
            a(f"v_add_u32 v{vOFFC+j}, {j*(8192-1024)}, v{vOFFC+j}")
        else:
            a(f"v_add_u32 v{vOFFC+j}, {j*(8192-1024)}, v{t2}")
    a(f"v_and_b32 v{t2}, 1, v{t0}")
    a(f"v_lshlrev_b32 v{t2}, 1, v{t2}")
    a(f"v_xor_b32 v{t2}, v{t1}, v{t2}")
    a(f"v_lshlrev_b32 v{t2}, 4, v{t2}")
    a(f"v_mul_u32_u24 v{t3}, 3584, v{t3}")
    a(f"v_add_u32 v{vOFF1}, v{t2}, v{t3}")
    a(f"v_xor_b32 v{t2}, 64, v{t2}")
    a(f"v_add_u32 v{vOFF1+1}, v{t2}, v{t3}")
    a(f"v_add_u32 v{vOFF1+1}, {8*3584-1024}, v{vOFF1+1}")
    return L

def setup_gemm_lds_addrs(wbase_sgpr_expr, cbase_sgpr_expr):
    L = []; a = L.append
    t0, t1, t2, t3, t4 = vT, vT + 1, vT + 2, vT + 3, vT + 4
    a(f"v_lshrrev_b32 v{t0}, 4, v{vLANE}")
    a(f"v_and_b32 v{t1}, 15, v{vLANE}")
    a(f"v_lshrrev_b32 v{t2}, 1, v{t1}")
    a(f"v_xor_b32 v{t2}, v{t2}, v{t0}")
    a(f"v_lshlrev_b32 v{t2}, 4, v{t2}")
    a(f"v_lshl_add_u32 v{t2}, v{t1}, 7, v{t2}")
    a(f"v_add_u32 v{vADC}, {cbase_sgpr_expr}, v{t2}")
    a(f"v_xor_b32 v{vADC+1}, 64, v{vADC}")
    a(f"v_lshrrev_b32 v{t2}, 2, v{t1}")
    a(f"v_lshl_add_u32 v{t3}, v{t0}, 3, v{t2}")
    a(f"v_and_b32 v{t4}, 1, v{t0}")
    a(f"v_lshl_add_u32 v{t2}, v{t4}, 2, v{t2}")
    a(f"v_lshlrev_b32 v{t2}, 5, v{t2}")
    a(f"v_lshl_add_u32 v{t2}, v{t3}, 8, v{t2}")
    a(f"v_and_b32 v{t4}, 3, v{t1}")
    a(f"v_lshl_add_u32 v{t2}, v{t4}, 3, v{t2}")
    a(f"v_add_u32 v{t2}, {wbase_sgpr_expr}, v{t2}")
    for nb in range(8):
        a(f"v_xor_b32 v{vADW+nb}, {nb*32}, v{t2}")
    a(f"v_lshrrev_b32 v{t2}, 3, v{t1}")
    a(f"v_and_b32 v{t0}, 1, v{t0}")
    a(f"v_lshl_add_u32 v{t2}, v{t0}, 1, v{t2}")
    a(f"v_lshlrev_b32 v{t2}, 5, v{t2}")
    a(f"v_lshl_add_u32 v{t2}, v{t3}, 7, v{t2}")
    a(f"v_lshl_add_u32 v{t2}, v{t4}, 3, v{t2}")
    a(f"v_add_u32 v{t2}, 16384, v{t2}")
    for fb in range(4):
        a(f"v_xor_b32 v{vAD1+fb}, {fb*32}, v{t2}")
    return L

def dma_group(voff, n, srdn, soff, lds_imm, flags=""):
    items = []
    for j in range(n):
        ins = f"buffer_load_dwordx4 v{voff+j}, {srd(srdn)}, {soff} offen offset:{1024*j} {flags}lds"
        items.append([ins])
    return items

def a1_acc(a, b):
    t = ((a >> 1) * 8 + b) * 2 + (a & 1)
    return V(64 + 4 * t) if t < 48 else A(128 + 4 * (t - 48))

def a1_dma_items(stage):
    it = []
    for grp in range(2):
        g = dma_group(vOFFW, 4, S_WKV, f"s{sA0}" if grp == 0 else f"s{sT0}", 0)
        pre = [f"s_add_u32 m0, s{sLW}, {stage*32768 + grp*4096}"]
        pre.append(f"s_add_u32 s{sT0}, s{sA0}, {16*8192}" if grp else "s_nop 0")
        g[0] = pre + g[0]
        it += g
    for grp in range(2):
        g = dma_group(vOFFC, 4, S_CKV, f"s{sA1}" if grp == 0 else f"s{sT0}", 0)
        pre = [f"s_add_u32 m0, s{sLW}, {65536 + (1-stage)*32768 + grp*4096}"]
        pre.append(f"s_add_u32 s{sT0}, s{sA1}, {32*1024}" if grp else f"s_add_u32 s{sA0}, s{sA0}, {64*8192}")
        g[0] = pre + g[0]
        it += g
    it[-1] = it[-1] + [f"s_add_u32 s{sA1}, s{sA1}, 128"]
    return it

def a1_reads(isV, stage, ks, fs):
    base = 64 * fs
    wf = base + (32 if isV else 0)
    cf = base + (0 if isV else 32)
    it = []
    for n in range(8):
        it.append(f"ds_read_b128 {ar(cf+4*n,4)}, v{vADC+ks} offset:{n*2048 + (1-stage)*32768}")
        for half in range(2):
            it.append(f"ds_read_b64_tr_b16 {ar(wf+4*n+2*half,2)}, v{vADW+n} offset:{ks*8192 + half*1024 + stage*32768}")
    return it

def a1_mfmas(fs, order="a"):
    base = 64 * fs
    if order == "a":
        idx = [(a, b) for a in range(8) for b in range(8)]
    else:
        idx = [(2 * p + e, b) for p in range(4) for b in range(8) for e in range(2)]
    return [mfma(a1_acc(a, b), A(base + 4 * a), A(base + 32 + 4 * b)) for a, b in idx]

def a1_chunk(isV, n_par, dma_items, last=False, tail_items=None, store_flags="sc1"):
    L = []
    st = n_par
    f = {}
    spread(f, a1_reads(isV, st, 1, 1), 0, 47)
    L += weave(a1_mfmas(0), f)
    L += ["s_waitcnt vmcnt(0) lgkmcnt(0)", "s_barrier"]
    if not last:
        f = {}
        spread(f, a1_reads(isV, 1 - st, 0, 0), 0, 47)
        if dma_items: spread(f, dma_items, 1, 62)
        L += weave(a1_mfmas(1), f)
        L += ["s_waitcnt lgkmcnt(0)"]
    else:
        L += stamp()
        f = {}
        if tail_items: spread(f, tail_items, 0, 40)
        LAG = 7
        for q in range(32):
            p, b = q // 8, q % 8
            r = a1_acc(2 * p, b)
            ins = []
            if r.t == 'a':
                tmp = 64 + 8 * (q - 24)
                for k in range(8): ins.append(f"v_accvgpr_read_b32 v{tmp+k}, a{r.b+k}")
                x = tmp
            else:
                x = r.b
            for k in range(4): ins.append(f"v_cvt_pk_bf16_f32 v{x+k}, v{x+2*k}, v{x+2*k+1}")
            if isV: off = p * 16384 + 8192 + b * 1024
            else:   off = (b >> 1) * 16384 + ((b & 1) * 4 + p) * 1024
            ins.append(f"s_add_u32 s{sT1}, s{sA2}, {off & ~4095}")
            ins.append(f"buffer_store_dwordx4 {vr(x,4)}, v{vL16}, {srd(S_WS)}, s{sT1} offen offset:{off & 4095} {store_flags}")
            pos = 2 * q + 1 + LAG
            if pos >= 64 and not f.get(64): put(f, 64, "s_nop 3")
            put(f, pos, *ins)
        L += weave(a1_mfmas(1, order="p"), f)
    return L

def gen_A1(tag):
    L = []; a = L.append
    L += setup_gemm_dma_offsets()
    a(f"s_and_b32 s{sT0}, s{sW}, 1")
    a(f"s_lshl_b32 s{sA0}, s{sT0}, 18")
    a(f"s_lshl_b32 s{sT1}, s{sH}, 8")
    a(f"s_add_u32 s{sA0}, s{sA0}, s{sT1}")
    a(f"s_lshl_b32 s{sA1}, s{sI}, 18")
    a(f"s_lshl_b32 s{sT1}, s{sW}, 16")
    a(f"s_add_u32 s{sA1}, s{sA1}, s{sT1}")
    for st in range(2):
        for it in a1_dma_items(st): L += it
    a(f"s_and_b32 s{sT0}, s{sW}, 1")
    a(f"s_lshl_b32 s{sA2}, s{sH}, 20")
    a(f"s_lshl_b32 s{sT1}, s{sI}, 17")
    a(f"s_add_u32 s{sA2}, s{sA2}, s{sT1}")
    a(f"s_lshl_b32 s{sT1}, s{sT0}, 16")
    a(f"s_add_u32 s{sA2}, s{sA2}, s{sT1}")
    a(f"s_lshr_b32 s{sT2}, s{sW}, 1")
    a(f"s_lshl_b32 s{sT2}, s{sT2}, 14")
    a(f"s_lshl_b32 s{sT3}, s{sT0}, 14")
    a(f"s_add_u32 s{sT3}, s{sT3}, 65536")
    L += setup_gemm_lds_addrs(f"s{sT2}", f"s{sT3}")
    for r in range(64, 256): a(f"v_mov_b32 v{r}, 0")
    for r in range(128, 192): a(f"v_accvgpr_write_b32 a{r}, 0")
    a(f"s_mov_b32 s{sCNT}, 3")
    a("s_waitcnt vmcnt(16)")
    a("s_barrier")
    L += stamp()
    a(f"s_cmp_ge_u32 s{sW}, 2")
    a(f"s_cbranch_scc1 {tag}_a1_v")
    segs = {}
    for isV in (0, 1):
        nm = f"{tag}_a1_{'v' if isV else 'k'}"
        a(f"{nm}:")
        pro = a1_reads(isV, 0, 0, 0) + ["s_waitcnt lgkmcnt(0)"]
        L += pro
        a(f"{nm}_loop:")
        body = a1_chunk(isV, 0, a1_dma_items(0)) + a1_chunk(isV, 1, a1_dma_items(1))
        body += [f"s_sub_u32 s{sCNT}, s{sCNT}, 1", f"s_cmp_lg_u32 s{sCNT}, 0", f"s_cbranch_scc1 {nm}_loop"]
        L += body
        n0 = _nst[0]
        tail = stamp() + a1_chunk(isV, 0, None) + stamp() + a1_chunk(isV, 1, None, last=True)
        if not isV: _nst[0] = n0
        L += tail
        segs[isV] = (pro, body, tail)
        for pr in check(pro + body + body + tail, nm): print(pr, file=sys.stderr)
        if not isV: a(f"s_branch {tag}_a1_done")
    a(f"{tag}_a1_done:")
    L += stamp()
    return L


vBIAS = 36
A2SET = (192, 128)
def a2_accQ(db, rb): return V(64 + 8 * (rb * 4 + (db >> 1)) + 4 * (db & 1))
def a2_accH(fb, rb): return V(192 + 8 * (rb * 2 + (fb >> 1)) + 4 * (fb & 1))

def a2_setup_offsets():
    L = []; a = L.append
    a(f"s_lshl_b32 s{sT0}, s{sI}, 1")
    a(f"s_sub_u32 s{sT1}, 28, s{sT0}")
    a(f"s_cmp_ge_u32 s{sW}, 2")
    a(f"s_cselect_b32 s{sRG}, s{sT1}, s{sT0}")
    a(f"s_add_u32 s{sRG}, s{sRG}, s{sW}")
    a(f"s_lshl_b32 s{sA0}, s{sW}, 17")
    a(f"s_lshl_b32 s{sT0}, s{sH}, 8")
    a(f"s_add_u32 s{sA0}, s{sA0}, s{sT0}")
    a(f"s_lshl_b32 s{sA1}, s{sRG}, 16")
    a(f"s_mul_i32 s{sA3}, s{sW}, {16*3584}")
    a(f"s_lshl_b32 s{sT0}, s{sH}, 7")
    a(f"s_add_u32 s{sA3}, s{sA3}, s{sT0}")
    a(f"s_cmp_ge_u32 s{sH}, 28")
    a(f"s_cselect_b32 s{sA3}, {OOB}, s{sA3}")
    return L

def a2_dma_items(stage):
    it = []
    g = dma_group(vOFFW, 4, S_WQ, f"s{sA0}", 0)
    g[0] = [f"s_lshr_b32 s{sT0}, s{sLW}, 1", f"s_add_u32 m0, s{sT0}, {stage*32768}", f"s_lshr_b32 s{sT0}, s{sLW}, 2"] + g[0]
    it += g
    g = dma_group(vOFF1, 2, S_W1, f"s{sA3}", 0)
    g[0] = [f"s_add_u32 m0, s{sT0}, {stage*32768 + 16384}", f"s_add_u32 s{sA0}, s{sA0}, {64*8192}"] + g[0]
    it += g
    for grp in range(2):
        g = dma_group(vOFFC, 4, S_X, f"s{sA1}" if grp == 0 else f"s{sT0}", 0)
        pre = [f"s_add_u32 m0, s{sLW}, {65536 + (1-stage)*32768 + grp*4096}"]
        pre.append(f"s_add_u32 s{sT0}, s{sA1}, {32*1024}" if grp else f"s_add_u32 s{sA3}, s{sA3}, {64*3584}")
        g[0] = pre + g[0]
        it += g
    it[-1] = it[-1] + [f"s_add_u32 s{sA1}, s{sA1}, 128"]
    return it

def a2_reads(stage, ks, fs):
    base = A2SET[fs]
    it = []
    for rb in range(4):
        it.append(f"ds_read_b128 {ar(base+48+4*rb,4)}, v{vADC+ks} offset:{rb*2048 + (1-stage)*32768}")
    for n in range(8):
        for half in range(2):
            it.append(f"ds_read_b64_tr_b16 {ar(base+4*n+2*half,2)}, v{vADW+n} offset:{ks*8192 + half*1024 + stage*32768}")
    for n in range(4):
        for half in range(2):
            it.append(f"ds_read_b64_tr_b16 {ar(base+32+4*n+2*half,2)}, v{vAD1+n} offset:{ks*4096 + half*512 + stage*32768}")
    return it

def a2_mfmas(fs, first=False, last=False):
    base = A2SET[fs]
    out = []
    def one(n, rb):
        if n < 8: return mfma(a2_accQ(n, rb), A(base + 4 * n), A(base + 48 + 4 * rb), 0 if first else None)
        return mfma(a2_accH(n - 8, rb), A(base + 4 * n), A(base + 48 + 4 * rb), V(vBIAS + 4 * (n - 8)) if first else None)
    if not last:
        for rb in range(4):
            for n in range(12): out.append(one(n, rb))
    else:
        for rb in range(4):
            for n in range(8): out.append(one(n, rb))
        for rb in range(4):
            for n in range(8, 12): out.append(one(n, rb))
    return out

QSCALE = 0x3e0293ee
sKVB, sDU, sC2, sN, sEND, sDIAG, sRING, sRUN, sOFFA, sVALA = 74, 75, 76, 77, 3, 98, 99, 100, 101, sCNT
RINGB, RINGA = 98304, 32768
sMASK = [4, 6, 56, 58]

def b_prologue_dma():
    pre = [f"s_lshl_b32 s{sKVB}, s{sH}, 20", f"s_lshr_b32 s{sT0}, s{sLW}, 1", f"s_add_u32 s{sKVB}, s{sKVB}, s{sT0}",
           f"s_cmp_ge_u32 s{sW}, 2", f"s_cselect_b32 s{sDU}, 3, 4",
           f"s_cselect_b32 s{sT1}, {OOB}, s{sKVB}", f"s_cselect_b32 s{sT2}, 0, 16384", f"s_add_u32 s{sT2}, s{sT2}, s{sKVB}"]
    it = []
    for n in range(-4, 0):
        so = sT1 if n == -4 else sT2
        g = [[f"buffer_load_dwordx4 v{vL16}, {srd(S_WS)}, s{so} offen offset:{1024*j} lds"] for j in range(4)]
        p = [f"s_add_u32 m0, s{sT0}, {RINGB + ((n+1)&3)*16384}"]
        p.append(f"s_add_u32 s{sT2}, s{sT2}, 16384" if n > -3 else "s_nop 0")
        g[0] = p + g[0]
        it += g
    it[0] = pre + it[0]
    return it

def gen_A2(tag, standalone=True):
    L = []; a = L.append
    if standalone:
        L += setup_gemm_dma_offsets()
        L += a2_setup_offsets()
        for st in range(2):
            for it in a2_dma_items(st): L += it
    t0 = vT
    a(f"v_lshrrev_b32 v{t0}, 4, v{vLANE}")
    a(f"v_lshlrev_b32 v{t0}, 3, v{t0}")
    a(f"s_lshl_b32 s{sT0}, s{sH}, 7")
    for fb in range(4):
        a(f"buffer_load_dwordx2 {vr(52+2*fb,2)}, v{t0}, {srd(S_B1)}, s{sT0} offen offset:{fb*32}")
    a(f"s_add_u32 s{sT3}, s{sLW}, 65536")
    L += setup_gemm_lds_addrs("0", f"s{sT3}")
    a("s_waitcnt vmcnt(0)")
    for fb in range(4):
        a(f"v_lshlrev_b32 v{vBIAS+4*fb}, 16, v{52+2*fb}")
        a(f"v_and_b32 v{vBIAS+4*fb+1}, 0xffff0000, v{52+2*fb}")
        a(f"v_lshlrev_b32 v{vBIAS+4*fb+2}, 16, v{53+2*fb}")
        a(f"v_and_b32 v{vBIAS+4*fb+3}, 0xffff0000, v{53+2*fb}")
    a("s_barrier")
    L += stamp()
    L += a2_reads(0, 0, 0)
    a("s_waitcnt lgkmcnt(0)")
    for n in range(8):
        st = n & 1
        f = {}
        spread(f, a2_reads(st, 1, 1), 0, 35)
        if n >= 4: spread(f, [f"v_accvgpr_write_b32 a{(n-4)*32+r}, 0" for r in range(32)], 0, 47)
        L += weave(a2_mfmas(0, first=(n == 0)), f)
        a("s_waitcnt vmcnt(16) lgkmcnt(0)" if n == 7 else "s_waitcnt vmcnt(0) lgkmcnt(0)")
        a("s_barrier")
        f = {}
        if n < 7:
            spread(f, a2_reads(1 - st, 0, 0), 0, 35)
            if n < 6: spread(f, a2_dma_items(st), 1, 46)
            else: spread(f, b_prologue_dma(), 1, 46)
            L += weave(a2_mfmas(1), f)
            a("s_waitcnt lgkmcnt(0)")
        else:
            put(f, 0, f"s_mov_b32 s{sT0}, {QSCALE}")
            for t in range(16):
                x = 64 + 8 * t
                ins = [f"v_mul_f32 v{x+k}, s{sT0}, v{x+k}" for k in range(8)]
                ins += [f"v_cvt_pk_bf16_f32 v{64+4*t+k}, v{x+2*k}, v{x+2*k+1}" for k in range(4)]
                put(f, max(2 * t + 1 + 4, 9 + t) , *ins)
            L += weave(a2_mfmas(1, last=True), f)
    L += stamp()
    a(f"s_cmp_lt_u32 s{sW}, 2")
    a(f"s_cbranch_scc1 {tag}_noqs")
    a(f"s_lshl_b32 s{sT0}, s{sW}, 14")
    a(f"s_sub_u32 s{sT0}, s{sT0}, 32768")
    a(f"v_add_u32 v{t0}, s{sT0}, v{vL16}")
    for t in range(16): a(f"ds_write_b128 v{t0}, {vr(64+4*t,4)} offset:{1024*t}")
    a(f"{tag}_noqs:")
    a(f"s_cmp_ge_u32 s{sH}, 28")
    a(f"s_cbranch_scc1 {tag}_nomish")
    a(f"s_mul_i32 s{sT1}, s{sRG}, {Z_RG}")
    a(f"s_lshl_b32 s{sT2}, s{sH}, 13")
    a(f"s_add_u32 s{sT1}, s{sT1}, s{sT2}")
    a(f"s_add_u32 s{sT1}, s{sT1}, {Z_BASE}")
    a(f"s_add_u32 s{sT2}, s{sT1}, 4096")
    a(f"s_mov_b32 s{sT0}, {LOG2E}")
    a(f"s_mov_b32 s{sT3}, 0x422c0000")
    E, N2 = 128, 136
    for t in range(8):
        rb, p = t >> 1, t & 1
        x = 192 + 8 * t
        for k in range(8): a(f"v_mul_f32 v{E+k}, s{sT0}, v{x+k}")
        for k in range(8): a(f"v_min_f32 v{E+k}, s{sT3}, v{E+k}")
        for k in range(8): a(f"v_exp_f32 v{E+k}, v{E+k}")
        for k in range(8): a(f"v_add_f32 v{N2+k}, 2.0, v{E+k}")
        for k in range(8): a(f"v_mul_f32 v{E+k}, v{E+k}, v{N2+k}")
        for k in range(8): a(f"v_add_f32 v{N2+k}, 2.0, v{E+k}")
        for k in range(8): a(f"v_rcp_f32 v{N2+k}, v{N2+k}")
        for k in range(8): a(f"v_mul_f32 v{x+k}, v{x+k}, v{E+k}")
        for k in range(8): a(f"v_mul_f32 v{x+k}, v{x+k}, v{N2+k}")
        for k in range(4): a(f"v_cvt_pk_bf16_f32 v{x+k}, v{x+2*k}, v{x+2*k+1}")
        a(f"buffer_store_dwordx4 {vr(x,4)}, v{vL16}, {srd(S_WS)}, s{sT2 if p else sT1} offen offset:{rb*1024} sc1")
    a("s_waitcnt vmcnt(8)")
    a(f"s_branch {tag}_mishdone")
    a(f"{tag}_nomish:")
    a("s_waitcnt vmcnt(0)")
    a(f"{tag}_mishdone:")
    return L

vE, vLU, vLR, vCI, vQ, vS, vP, vX = 32, 40, 44, 48, 64, 128, 192, 224
vKA, vNINF, vTH = 4, 5, 6
aO, aK, aV = 0, 128, 160
def Sreg(p, qb, kvb): return vS + 32 * p + (qb * 2 + kvb) * 4
def Preg(p, qb): return vP + 16 * p + 4 * qb
def Oreg(qb, db): return aO + (qb * 8 + db) * 4

def qk_mfmas(p, czero=False):
    return [mfma(V(Sreg(p, qb, kvb)), A(aK + (kvb * 4 + ks) * 4), V(vQ + 16 * qb + 4 * ks),
                 (0 if czero else V(vCI + 4 * qb)) if ks == 0 else None)
            for kvb in range(2) for ks in range(4) for qb in range(4)]
def pv_mfmas(p):
    return [mfma(A(Oreg(qb, db)), A(aV + 4 * db), V(Preg(p, qb))) for qb in range(4) for db in range(8)]

def sm_fill(f, p, qb0):
    for k in range(16):
        qb, e = qb0 + k // 8, k % 8
        put(f, 2 * k, f"v_exp_f32 v{vE+e}, v{Sreg(p,qb,0)+e}")
        if e == 1: put(f, 2 * k + 1, f"v_add_f32 v{vLU+qb}, v{vE}, v{vE+1}")
        elif e > 1: put(f, 2 * k + 1, f"v_add_f32 v{vLU+qb}, v{vLU+qb}, v{vE+e}")
        if e & 1: put(f, 2 * k + 1, f"v_cvt_pk_bf16_f32 v{Preg(p,qb)+e//2}, v{vE+e-1}, v{vE+e}")

def v_reads(): return [f"ds_read_b128 {ar(aV+4*db,4)}, v{vKA} offset:{8192+1024*db}" for db in range(8)]
def k_reads(): return [f"ds_read_b128 {ar(aK+4*j,4)}, v{vKA} offset:{1024*j}" for j in range(8)]

def ka_update():
    return [f"s_add_u32 s{sT0}, s{sN}, 2", f"s_and_b32 s{sT0}, s{sT0}, 3", f"s_lshl_b32 s{sT0}, s{sT0}, 14",
            f"s_add_u32 s{sT0}, s{sT0}, s{sRING}", f"v_add_u32 v{vKA}, s{sT0}, v{vL16}"]

def dmaB_items():
    c = [f"s_add_u32 s{sT0}, s{sN}, s{sDU}",
         f"s_lshr_b32 s{sT1}, s{sT0}, 1",
         f"s_sub_i32 s{sT1}, s{sT1}, s{sC2}",
         f"s_max_i32 s{sT2}, s{sT1}, 0",
         f"s_lshl_b32 s{sT2}, s{sT2}, 1",
         f"s_add_u32 s{sT2}, s{sT2}, s{sT0}",
         f"s_lshl_b32 s{sT2}, s{sT2}, 14",
         f"s_add_u32 s{sT2}, s{sT2}, s{sKVB}",
         f"s_cmp_eq_u32 s{sT1}, 0",
         f"s_cselect_b32 s{sOFFA}, s{sA0}, {(-32768) & 0xffffffff}",
         f"s_add_u32 s{sOFFA}, s{sOFFA}, s{sT2}",
         f"s_cmp_ge_u32 s{sT0}, 34",
         f"s_cselect_b32 s{sT2}, {OOB}, s{sT2}",
         f"s_cselect_b32 s{sVALA}, -1, s{sT1}",
         f"s_add_u32 s{sN}, s{sN}, 1",
         f"s_and_b32 s{sA1}, s{sN}, 3",
         f"s_lshl_b32 s{sA1}, s{sA1}, 14",
         f"s_add_u32 s{sA1}, s{sA1}, s{sA2}",
         f"s_add_u32 m0, s{sA1}, {RINGB}"]
    it = [c[0:4], c[4:8], c[8:11], c[11:14], c[14:19]]
    it += [[f"buffer_load_dwordx4 v{vL16}, {srd(S_WS)}, s{sT2} offen offset:{1024*j} lds"] for j in range(4)]
    return it

def dmaA_items(lbl):
    it = []
    for h in range(2):
        g = [f"s_cmp_lt_i32 s{sVALA}, 0", f"s_cbranch_scc1 {lbl}_{h}", f"s_add_u32 m0, s{sA1}, {RINGA}", "s_nop 0"]
        g += [f"buffer_load_dwordx4 v{vL16}, {srd(S_WS)}, s{sOFFA} offen offset:{1024*(2*h+j)} lds" for j in range(2)]
        g += [f"{lbl}_{h}:"]
        it.append(g)
    return it

def mask_block(p, lbl):
    L = [f"s_lshr_b32 s{sT0}, s{sN}, 1", f"s_cmp_lg_u32 s{sT0}, s{sDIAG}", f"s_cbranch_scc1 {lbl}", "s_nop 7"]
    if p == 0: diag, full = [(0, 0), (1, 1)], [(0, 1)]
    else: diag, full = [(2, 0), (3, 1)], [(0, 0), (0, 1), (1, 0), (1, 1), (2, 1)]
    for qb, kvb in full:
        for r in range(4): L.append(f"v_mov_b32 v{Sreg(p,qb,kvb)+r}, v{vNINF}")
    for qb, kvb in diag:
        for r in range(4):
            x = Sreg(p, qb, kvb) + r
            L.append(f"v_cndmask_b32 v{x}, v{vNINF}, v{x}, {sr(sMASK[r],2)}")
    L.append(f"{lbl}:")
    return L

def xlane(op, regs, tmp):
    L = []
    for sw in ("v_permlane16_swap_b32", "v_permlane32_swap_b32"):
        for r, t in zip(regs, tmp): L.append(f"v_mov_b32 v{t}, v{r}")
        if len(regs) < 3: L.append("s_nop 1")
        for r, t in zip(regs, tmp): L.append(f"{sw} v{r}, v{t}")
        for r, t in zip(regs, tmp): L.append(f"{op} v{r}, v{r}, v{t}")
    return L

def max8(dst, x):
    return [f"v_max3_f32 v{dst}, v{x}, v{x+1}, v{x+2}", f"v_max3_f32 v{dst}, v{dst}, v{x+3}, v{x+4}",
            f"v_max3_f32 v{dst}, v{dst}, v{x+5}, v{x+6}", f"v_max_f32 v{dst}, v{dst}, v{x+7}"]

def check_block(slow, ret):
    return [f"v_max3_f32 v{vE}, v{vLU}, v{vLU+1}, v{vLU+2}", f"v_max_f32 v{vE}, v{vE}, v{vLU+3}",
            f"v_cmp_lt_f32 vcc, v{vTH}, v{vE}", f"s_cbranch_vccnz {slow}", f"{ret}:"]
def lrun_add(): return [f"v_add_f32 v{vLR+qb}, v{vLR+qb}, v{vLU+qb}" for qb in range(4)]

def slow_block(pp, slow, ret):
    L = [f"{slow}:", "s_nop 7"]
    M = vX
    for qb in range(4): L += max8(M + qb, Sreg(pp, qb, 0))
    L += xlane("v_max_f32", [M + q for q in range(4)], [M + 4 + q for q in range(4)])
    for qb in range(4): L.append(f"v_max_f32 v{M+qb}, 0, v{M+qb}")
    for qb in range(4):
        for e in range(8):
            L.append(f"v_sub_f32 v{Sreg(pp,qb,0)+e}, v{Sreg(pp,qb,0)+e}, v{M+qb}")
            L.append(f"v_sub_f32 v{Sreg(1-pp,qb,0)+e}, v{Sreg(1-pp,qb,0)+e}, v{M+qb}")
        for r in range(4): L.append(f"v_sub_f32 v{vCI+4*qb+r}, v{vCI+4*qb+r}, v{M+qb}")
    for qb in range(4): L.append(f"v_exp_f32 v{M+4+qb}, -v{M+qb}")
    L.append("s_nop 0")
    for qb in range(4):
        L.append(f"v_mul_f32 v{vLR+qb}, v{vLR+qb}, v{M+4+qb}")
        for blk in range(4):
            o = Oreg(qb, 2 * blk)
            for k in range(8): L.append(f"v_accvgpr_read_b32 v{M+8+k}, a{o+k}")
            for k in range(8): L.append(f"v_mul_f32 v{M+8+k}, v{M+8+k}, v{M+4+qb}")
            for k in range(8): L.append(f"v_accvgpr_write_b32 a{o+k}, v{M+8+k}")
    for qb in range(4):
        for e in range(8): L.append(f"v_exp_f32 v{vE+e}, v{Sreg(pp,qb,0)+e}")
        L.append(f"v_add_f32 v{vLU+qb}, v{vE}, v{vE+1}")
        for e in range(2, 8): L.append(f"v_add_f32 v{vLU+qb}, v{vLU+qb}, v{vE+e}")
        for j in range(4): L.append(f"v_cvt_pk_bf16_f32 v{Preg(pp,qb)+j}, v{vE+2*j}, v{vE+2*j+1}")
    L += ["s_nop 1", f"s_branch {ret}"]
    return L

def flat(f, n):
    out = []
    for k in range(-1, n):
        cur = f.get(k, [])
        if out and out[-1].startswith("v_exp") and cur: out.append("s_nop 0")
        out += cur
    return out

def b_full(tag, p):
    L = []
    f = {}
    sm_fill(f, 1 - p, 2)
    for k, r in enumerate(v_reads()): put(f, 2 * k + 1, r)
    da = dmaA_items(f"{tag}_fa{p}")
    put(f, 17, *da[0]); put(f, 25, *da[1])
    L += weave(qk_mfmas(p), f)
    L += check_block(f"{tag}_slow{1-p}", f"{tag}_ret{1-p}")
    L += ["s_waitcnt vmcnt(8) lgkmcnt(0)", "s_barrier"]
    L += mask_block(p, f"{tag}_nm{p}")
    f = {}
    ku = ka_update()
    la = lrun_add()
    put(f, -1, *ku[:4])
    put(f, 0, ku[4])
    sm_fill(f, p, 0)
    f[1] = [la[0], la[1]] + f.get(1, [])
    put(f, 17, la[2], la[3])
    for k, r in enumerate(k_reads()): put(f, 2 * k + 3, r)
    db = dmaB_items()
    for k, it in enumerate(db[:5]): put(f, 5 + 4 * k, *it)
    for k, it in enumerate(db[5:]): put(f, 23 + 2 * k, *it)
    L += weave(pv_mfmas(1 - p), f)
    L += ["s_waitcnt lgkmcnt(0)"]
    return L

def b_start(tag):
    L = []
    f = {}
    da = dmaA_items(f"{tag}_sa")
    put(f, 4, *da[0]); put(f, 16, *da[1])
    L += weave(qk_mfmas(0, czero=True), f)
    L += ["s_waitcnt vmcnt(24)", "s_barrier"]
    L += ka_update() + k_reads()
    L += mask_block(0, f"{tag}_nms")
    M = vX
    for qb in range(4): L += max8(M + qb, Sreg(0, qb, 0))
    L += xlane("v_max_f32", [M + q for q in range(4)], [M + 4 + q for q in range(4)])
    db = dmaB_items()
    for it in db[:5]: L += it
    for qb in range(4):
        for e in range(8): L.append(f"v_sub_f32 v{Sreg(0,qb,0)+e}, v{Sreg(0,qb,0)+e}, v{M+qb}")
        for r in range(4): L.append(f"v_sub_f32 v{vCI+4*qb+r}, 0, v{M+qb}")
        L.append(f"v_mov_b32 v{vLR+qb}, 0")
        L += db[5 + qb]
    for qb in range(2):
        for e in range(8): L.append(f"v_exp_f32 v{vE+e}, v{Sreg(0,qb,0)+e}")
        L.append(f"v_add_f32 v{vLU+qb}, v{vE}, v{vE+1}")
        for e in range(2, 8): L.append(f"v_add_f32 v{vLU+qb}, v{vLU+qb}, v{vE+e}")
        for j in range(4): L.append(f"v_cvt_pk_bf16_f32 v{Preg(0,qb)+j}, v{vE+2*j}, v{vE+2*j+1}")
    L += ["s_waitcnt lgkmcnt(0)"]
    return L

def b_end(tag):
    L = v_reads()
    da = dmaA_items(f"{tag}_ea")
    for qb in (2, 3):
        for e in range(8): L.append(f"v_exp_f32 v{vE+e}, v{Sreg(1,qb,0)+e}")
        L.append(f"v_add_f32 v{vLU+qb}, v{vE}, v{vE+1}")
        for e in range(2, 8): L.append(f"v_add_f32 v{vLU+qb}, v{vLU+qb}, v{vE+e}")
        for j in range(4): L.append(f"v_cvt_pk_bf16_f32 v{Preg(1,qb)+j}, v{vE+2*j}, v{vE+2*j+1}")
        L += da[qb - 2]
    L += check_block(f"{tag}_slowe", f"{tag}_rete")
    L += ["s_waitcnt vmcnt(8) lgkmcnt(0)", "s_barrier"]
    f = {}
    put(f, 0, *lrun_add())
    db = dmaB_items()
    for k, it in enumerate(db[:5]): put(f, 2 + 2 * k, *it)
    for k, it in enumerate(db[5:]): put(f, 12 + 4 * k, *it)
    L += weave(pv_mfmas(1), f)
    return L

def ctx_base(dst, rgreg):
    return [f"s_mul_i32 s{dst}, s{rgreg}, {Z_RG}", f"s_lshl_b32 s{sT0}, s{sH}, 14", f"s_add_u32 s{dst}, s{dst}, s{sT0}",
            f"s_add_u32 s{dst}, s{dst}, {Z_BASE + 56*4096}"]

def b_epi(tag):
    L = []; a = L.append
    t = 7
    a(f"s_sub_u32 s{sT0}, 1, s{sW}")
    a(f"s_lshl_b32 s{sT0}, s{sT0}, 14")
    a(f"v_add_u32 v{t}, s{sT0}, v{vL16}")
    for k in range(16): a(f"ds_read_b128 {vr(vQ+4*k,4)}, v{t} offset:{1024*k}")
    L += xlane("v_add_f32", [vLR + q for q in range(4)], [vE + q for q in range(4)])
    for qb in range(4): a(f"v_rcp_f32 v{vLR+qb}, v{vLR+qb}")
    L += ctx_base(sA3, sRG)
    da = dmaA_items(f"{tag}_xa")
    def blk(qb, pp, tmp):
        o = Oreg(qb, 2 * pp)
        B = [f"v_accvgpr_read_b32 v{tmp+k}, a{o+k}" for k in range(8)]
        B += [f"v_accvgpr_write_b32 a{o+k}, 0" for k in range(8)]
        B += [f"v_mul_f32 v{tmp+k}, v{tmp+k}, v{vLR+qb}" for k in range(8)]
        B += [f"v_cvt_pk_bf16_f32 v{tmp+k}, v{tmp+2*k}, v{tmp+2*k+1}" for k in range(4)]
        B += [f"s_add_u32 s{sT3}, s{sA3}, {pp*4096}",
              f"buffer_store_dwordx4 {vr(tmp,4)}, v{vL16}, {srd(S_WS)}, s{sT3} offen offset:{qb*1024} sc1"]
        return B
    blocks = [(qb, pp) for qb in range(4) for pp in range(4)]
    K1 = 5
    L += da[0]
    for k in range(K1):
        L += blk(*blocks[k], vS + 8 * (k & 7))
        if k == 2: L += da[1]
    a(f"s_waitcnt vmcnt({8+K1}) lgkmcnt(0)")
    a("s_barrier")
    a(f"s_mov_b32 s{sRING}, {RINGA}")
    L += ka_update() + k_reads()
    db = dmaB_items()
    for it in db[:5]: L += it
    for k in range(K1, 16):
        L += blk(*blocks[k], vS + 8 * (k & 7))
        if k - K1 < 4: L += db[5 + k - K1]
    a("s_waitcnt lgkmcnt(0)")
    return L

def b_final(tag):
    L = []; a = L.append
    t, t2 = 7, 8
    a(f"s_mul_i32 s{sT0}, s{sW}, 20480")
    a(f"v_add_u32 v{t}, s{sT0}, v{vL16}")
    a(f"s_sub_u32 s{sT0}, {3*20480}, s{sT0}")
    a(f"v_add_u32 v{t2}, s{sT0}, v{vL16}")
    L += ctx_base(sA3, sRG)
    a(f"s_cmp_lt_u32 s{sW}, 2")
    a(f"s_cbranch_scc1 {tag}_finA")
    for isA in (0, 1):
        keep = (2, 3) if isA else (0, 1)
        send = (0, 1) if isA else (2, 3)
        if isA: a(f"{tag}_finA:")
        X = vX
        a(f"v_mov_b32 v{X}, v{vCI+4*send[0]}"); a(f"v_mov_b32 v{X+1}, v{vCI+4*send[1]}")
        a(f"v_mov_b32 v{X+2}, v{vLR+send[0]}"); a(f"v_mov_b32 v{X+3}, v{vLR+send[1]}")
        a(f"ds_write_b128 v{t}, {vr(X,4)} offset:16384")
        for k in range(16): a(f"ds_write_b128 v{t}, {ar(Oreg(send[0],0)+4*k,4)} offset:{1024*k}")
        own = 64
        for k in range(64): a(f"v_accvgpr_read_b32 v{own+k}, a{Oreg(keep[0],0)+k}")
        a("s_waitcnt lgkmcnt(0)")
        a("s_barrier")
        a(f"ds_read_b128 {vr(X,4)}, v{t2} offset:16384")
        oth = 128
        for k in range(16): a(f"ds_read_b128 {vr(oth+4*k,4)}, v{t2} offset:{1024*k}")
        a("s_waitcnt lgkmcnt(15)")
        a("s_waitcnt lgkmcnt(15)")
        for j in range(2):
            a(f"v_min_f32 v{X+4+j}, v{X+j}, v{vCI+4*keep[j]}")
        for j in range(2):
            a(f"v_sub_f32 v{X+6+j}, v{X+4+j}, v{vCI+4*keep[j]}")
            a(f"v_sub_f32 v{X+8+j}, v{X+4+j}, v{X+j}")
        for j in range(4): a(f"v_exp_f32 v{X+6+j}, v{X+6+j}")
        a("s_nop 0")
        for j in range(2):
            a(f"v_mul_f32 v{X+4+j}, v{vLR+keep[j]}, v{X+6+j}")
        for j in range(2):
            a(f"v_fma_f32 v{X+4+j}, v{X+2+j}, v{X+8+j}, v{X+4+j}")
        L += xlane("v_add_f32", [X + 4, X + 5], [X + 10, X + 11])
        for j in range(2): a(f"v_rcp_f32 v{X+4+j}, v{X+4+j}")
        a("s_nop 0")
        for j in range(2):
            a(f"v_mul_f32 v{X+6+j}, v{X+6+j}, v{X+4+j}")
            a(f"v_mul_f32 v{X+8+j}, v{X+8+j}, v{X+4+j}")
        a("s_waitcnt lgkmcnt(0)")
        for j in range(2):
            for pp in range(4):
                o = own + 32 * j + 8 * pp; q = oth + 32 * j + 8 * pp
                for k in range(8): a(f"v_mul_f32 v{o+k}, v{o+k}, v{X+6+j}")
                for k in range(8): a(f"v_fma_f32 v{o+k}, v{q+k}, v{X+8+j}, v{o+k}")
                for k in range(4): a(f"v_cvt_pk_bf16_f32 v{o+k}, v{o+2*k}, v{o+2*k+1}")
                a(f"s_add_u32 s{sT3}, s{sA3}, {pp*4096}")
                a(f"buffer_store_dwordx4 {vr(o,4)}, v{vL16}, {srd(S_WS)}, s{sT3} offen offset:{keep[j]*1024} sc1")
        if not isA: a(f"s_branch {tag}_findone")
    a(f"{tag}_findone:")
    return L

def gen_B(tag):
    L = []; a = L.append
    t0, t1 = vT, vT + 1
    a(f"v_lshrrev_b32 v{t0}, 4, v{vLANE}")
    a(f"v_lshlrev_b32 v{t0}, 2, v{t0}")
    a(f"v_and_b32 v{t1}, 15, v{vLANE}")
    a(f"v_sub_u32 v{t1}, v{t1}, v{t0}")
    for r in range(4): a(f"v_cmp_le_i32 {sr(sMASK[r],2)}, {r}, v{t1}")
    a(f"v_mov_b32 v{vNINF}, 0xff800000")
    a(f"v_mov_b32 v{vTH}, 0x4e800000")
    a(f"s_lshl_b32 s{sC2}, s{sI}, 1")
    a(f"s_add_u32 s{sC2}, s{sC2}, 2")
    a(f"s_lshl_b32 s{sT0}, s{sI}, 3")
    a(f"s_sub_u32 s{sA0}, 58, s{sT0}")
    a(f"s_lshl_b32 s{sA0}, s{sA0}, 14")
    a(f"s_lshl_b32 s{sA2}, s{sW}, 12")
    a(f"s_mov_b32 s{sA1}, 0")
    a(f"s_mov_b32 s{sOFFA}, 0")
    a(f"s_mov_b32 s{sVALA}, -1")
    a(f"s_mov_b32 s{sRING}, {RINGB}")
    a(f"s_mov_b32 s{sRUN}, 0")
    a(f"s_lshl_b32 s{sT0}, s{sRG}, 1")
    a(f"s_add_u32 s{sT0}, s{sT0}, 2")
    a(f"s_cmp_eq_u32 s{sW}, 2")
    a(f"s_cselect_b32 s{sT1}, 16, 99")
    a(f"s_cmp_lt_u32 s{sW}, 2")
    a(f"s_cselect_b32 s{sEND}, s{sT0}, 34")
    a(f"s_cselect_b32 s{sDIAG}, s{sRG}, s{sT1}")
    a(f"s_mov_b32 s{sN}, -1")
    a("s_waitcnt lgkmcnt(0)")
    a("s_barrier")
    L += stamp()
    L += ka_update() + k_reads()
    a(f"s_mov_b32 s{sN}, 0")
    a("s_waitcnt lgkmcnt(0)")
    pro = list(L)
    st, f1, f0, en, ep, fin = b_start(tag), b_full(tag, 1), b_full(tag, 0), b_end(tag), b_epi(tag), b_final(tag)
    a(f"{tag}_start:")
    L += st
    a(f"{tag}_loop:")
    L += f1
    br = [f"s_cmp_eq_u32 s{sN}, s{sEND}", f"s_cbranch_scc1 {tag}_end"]
    L += br
    L += f0
    a(f"s_branch {tag}_loop")
    sl = [slow_block(0, f"{tag}_slow0", f"{tag}_ret0"), slow_block(1, f"{tag}_slow1", f"{tag}_ret1"), slow_block(1, f"{tag}_slowe", f"{tag}_rete")]
    for x in sl: L += x
    a(f"{tag}_end:")
    L += en
    mid = [f"s_cmp_eq_u32 s{sEND}, 34", f"s_cbranch_scc1 {tag}_final"]
    L += mid
    L += ep
    sw = [f"s_sub_u32 s{sRG}, 31, s{sRG}",
          f"s_mov_b32 s{sEND}, 34",
          f"s_cmp_eq_u32 s{sW}, 0",
          f"s_cselect_b32 s{sDIAG}, s{sC2}, 99",
          f"s_cmp_lt_u32 s{sN}, 34",
          f"s_cbranch_scc1 {tag}_start"]
    L += sw
    for qb in range(4):
        a(f"v_mov_b32 v{vCI+4*qb}, 0x7f800000")
        a(f"v_mov_b32 v{vLR+qb}, 0")
    a("s_barrier")
    a(f"{tag}_final:")
    L += stamp()
    L += fin
    def strip(seg):
        out, skip = [], None
        for l in seg:
            if skip:
                if l == skip + ":": skip = None
                continue
            out.append(l)
            if l.startswith("s_cbranch_scc1") and (l.split()[1] + ":") in seg: skip = l.split()[1]
        return out
    for nm, seq in (("a", pro + st + f1 + br + f0 + f1 + br + en + mid + ep + sw + st), ("b", f1 + br + en + mid + fin)):
        for pr in check(seq, tag + nm) + check(strip(seq), tag + nm + "-skip"): print(pr, file=sys.stderr)
    for x, fu in ((sl[0], f1), (sl[1], f0), (sl[2], en)):
        i = [k for k, l in enumerate(fu) if l.startswith("s_cbranch_vccnz")][0]
        for pr in check(fu[:i + 1] + x + fu[i + 1:], tag + "slow"): print(pr, file=sys.stderr)
    return L

def gen_C(tag):
    L = []; a = L.append
    vOFFO, vADO, vXO, vGO = 4, 16, 8, 9
    ACCB, ACCA = 128, 192
    sLC = sA2
    t0, t1, t2, t3, t4 = 20, 21, 22, 23, 24
    a(f"v_lshrrev_b32 v{t0}, 4, v{vLANE}")
    a(f"v_and_b32 v{t1}, 7, v{vLANE}")
    a(f"v_lshlrev_b32 v{t2}, 1, v{t0}")
    a(f"v_xor_b32 v{t1}, v{t1}, v{t2}")
    a(f"v_lshlrev_b32 v{t1}, 4, v{t1}")
    a(f"v_lshrrev_b32 v{t2}, 3, v{vLANE}")
    a(f"v_lshl_add_u32 v{t1}, v{t2}, 10, v{t1}")
    for j in range(4): a(f"v_add_u32 v{vOFFO+j}, {j*(8192-1024)}, v{t1}")
    a(f"v_and_b32 v{t1}, 15, v{vLANE}")
    a(f"v_lshlrev_b32 v{vGO}, 4, v{t0}")
    a(f"v_lshl_add_u32 v{vXO}, v{t1}, 10, v{vGO}")
    a(f"s_lshl_b32 s{sLC}, s{sW}, 15")
    a(f"s_lshl_b32 s{sT0}, s{sH}, 16")
    a(f"s_lshl_b32 s{sT1}, s{sW}, 8")
    a(f"s_add_u32 s{sT0}, s{sT0}, s{sT1}")
    for kk in range(4):
        a(f"buffer_load_dwordx4 {vr(48+4*kk,4)}, v{vGO}, {srd(S_GATE)}, s{sT1} offen offset:{kk*64}")
    for rb in range(4):
        for kk in range(4):
            a(f"buffer_load_dwordx4 {vr(64+16*rb+4*kk,4)}, v{vXO}, {srd(S_X)}, s{sT0} offen offset:{kk*64}")
        if rb < 3: a(f"s_add_u32 s{sT0}, s{sT0}, 16384")
    a(f"s_mul_i32 s{sA0}, s{sW}, {14*32768}")
    a(f"s_lshl_b32 s{sT0}, s{sI}, 7")
    a(f"s_add_u32 s{sA0}, s{sA0}, s{sT0}")
    a(f"s_mul_i32 s{sA3}, s{sH}, {Z_RG}")
    a(f"s_add_u32 s{sA3}, s{sA3}, {Z_BASE}")
    a(f"s_mul_i32 s{sA1}, s{sW}, {14*4096}")
    a(f"s_add_u32 s{sA1}, s{sA1}, s{sA3}")
    def group(k):
        it = []
        pre = []
        if k == 14:
            pre += [f"s_lshl_b32 s{sA0}, s{sW}, 20", f"s_lshl_b32 s{sT0}, s{sI}, 7", f"s_add_u32 s{sA0}, s{sA0}, s{sT0}",
                    f"s_lshl_b32 s{sA1}, s{sW}, 17", f"s_add_u32 s{sA1}, s{sA1}, s{sA3}", f"s_add_u32 s{sA1}, s{sA1}, {56*4096}"]
        pre += [f"s_add_u32 m0, s{sLC}, {(k&7)*4096}"]
        zl = [f"buffer_load_dwordx4 {ar(16*(k&7)+4*j,4)}, v{vL16}, {srd(S_WS)}, s{sA1} offen offset:{1024*j}" for j in range(4)]
        wl = [f"buffer_load_dwordx4 v{vOFFO+j}, {srd(S_W2 if k < 14 else S_WO)}, s{sA0} offen offset:{1024*j} lds" for j in range(4)]
        it.append(pre + [zl[0]])
        it += [[wl[0]], [wl[1]], [wl[2]], [wl[3], f"s_add_u32 s{sA0}, s{sA0}, 32768"], [zl[1]], [zl[2]], [zl[3], f"s_add_u32 s{sA1}, s{sA1}, 4096"]]
        return it
    for k in range(5):
        for it in group(k): L += it
    a(f"v_lshrrev_b32 v{t2}, 2, v{t1}")
    a(f"v_lshl_add_u32 v{t3}, v{t0}, 2, v{t2}")
    a(f"v_lshrrev_b32 v{t2}, 1, v{t3}")
    a(f"v_and_b32 v{t2}, 3, v{t2}")
    a(f"v_lshlrev_b32 v{t2}, 5, v{t2}")
    a(f"v_lshl_add_u32 v{t2}, v{t3}, 7, v{t2}")
    a(f"v_and_b32 v{t4}, 3, v{t1}")
    a(f"v_lshl_add_u32 v{t2}, v{t4}, 3, v{t2}")
    a(f"v_add_u32 v{t2}, s{sLC}, v{t2}")
    for mb in range(4): a(f"v_xor_b32 v{vADO+mb}, {mb*32}, v{t2}")
    a("s_waitcnt vmcnt(40)")
    L += stamp()
    for kk in range(4):
        for rb in range(4):
            a(mfma(V(32 + 4 * rb), V(48 + 4 * kk), V(64 + 16 * rb + 4 * kk), 0 if kk == 0 else None))
    for k in (5, 6):
        for it in group(k): L += it
    a(f"v_mov_b32 v33, v36"); a(f"v_mov_b32 v34, v40"); a(f"v_mov_b32 v35, v44")
    a(f"s_lshl_b32 s{sT0}, s{sW}, 10")
    a(f"s_add_u32 s{sT0}, s{sT0}, 131072")
    a(f"v_add_u32 v{t2}, s{sT0}, v{vL16}")
    a(f"ds_write_b128 v{t2}, v[32:35]")
    def trreads(k):
        return [f"ds_read_b64_tr_b16 {ar(128+16*(k&1)+4*mb+2*half,2)}, v{vADO+mb} offset:{(k&7)*4096+half*2048}"
                for mb in range(4) for half in range(2)]
    a("s_waitcnt vmcnt(48)")
    L += trreads(0)
    for k in range(46):
        outstanding = min(45, k + 6) - (k + 1)
        if k < 45: a(f"s_waitcnt vmcnt({max(outstanding,0)*8}) lgkmcnt(0)")
        else: a("s_waitcnt lgkmcnt(0)")
        if k == 4: a("s_barrier")
        if k in (0, 14, 30): L += stamp()
        acc = ACCB if k < 14 else ACCA
        first = k in (0, 14)
        mf = [mfma(V(acc + (rb * 4 + mb) * 4), A(128 + 16 * (k & 1) + 4 * mb), A(16 * (k & 7) + 4 * rb), 0 if first else None)
              for rb in range(4) for mb in range(4)]
        f = {}
        if k < 45: spread(f, trreads(k + 1), 0, 7)
        if k + 7 <= 45: spread(f, group(k + 7), 0, 15)
        if k == 4:
            put(f, 8, f"v_add_u32 v{t2}, 131072, v{vL16}")
            for w in range(4): put(f, 9 + w, f"ds_read_b128 {vr(32+4*w,4)}, v{t2} offset:{1024*w}")
        if k == 5:
            ins = []
            for rb in range(4):
                ins += [f"v_add_f32 v{32+rb}, v{32+rb}, v{36+rb}", f"v_add_f32 v{40+rb}, v{40+rb}, v{44+rb}"]
            for rb in range(4): ins += [f"v_add_f32 v{32+rb}, v{32+rb}, v{40+rb}"]
            for rb in range(4): ins += [f"v_mul_f32 v{32+rb}, 0xbfb8aa3b, v{32+rb}"]
            for rb in range(4): ins += [f"v_exp_f32 v{32+rb}, v{32+rb}"]
            for rb in range(4): ins += [f"v_add_f32 v{32+rb}, 1.0, v{32+rb}"]
            for rb in range(4): ins += [f"v_rcp_f32 v{32+rb}, v{32+rb}"]
            spread(f, ins, 0, 15)
        L += weave(mf, f)
    L += stamp()
    a(f"v_add_u32 v{t2}, s{sLC}, v{vL16}")
    a(f"s_lshl_b32 s{sT0}, s{sW}, 12")
    a(f"v_add_u32 v{t3}, s{sT0}, v{vL16}")
    a(f"v_add_u32 v{t4}, 65536, v{t3}")
    a("s_nop 4")
    for rb in range(4):
        for q in range(4):
            for r in range(4):
                e = rb * 16 + q * 4 + r
                a(f"v_sub_f32 v{ACCA+e}, v{ACCA+e}, v{ACCB+e}")
            for r in range(4):
                e = rb * 16 + q * 4 + r
                a(f"v_fma_f32 v{ACCB+e}, v{32+rb}, v{ACCA+e}, v{ACCB+e}")
            a(f"ds_write_b128 v{t2}, {vr(ACCB+rb*16+q*4,4)} offset:{rb*4096+q*1024}")
    a("s_waitcnt lgkmcnt(0)")
    a("s_barrier")
    for w in range(4):
        for q in range(4):
            a(f"ds_read_b128 {vr(64+w*16+q*4,4)}, v{t3 if w < 2 else t4} offset:{(w&1)*32768+q*1024}")
    a(f"v_lshrrev_b32 v{t0}, 1, v{vGO}")
    a(f"v_lshl_add_u32 v{t0}, v{t1}, 10, v{t0}")
    a(f"s_lshl_b32 s{sT0}, s{sH}, 16")
    a(f"s_lshl_b32 s{sT1}, s{sW}, 14")
    a(f"s_add_u32 s{sT0}, s{sT0}, s{sT1}")
    a(f"s_lshl_b32 s{sT1}, s{sI}, 7")
    a(f"s_add_u32 s{sT0}, s{sT0}, s{sT1}")
    a("s_waitcnt lgkmcnt(0)")
    for q in range(4):
        for r in range(4):
            e = q * 4 + r
            a(f"v_add_f32 v{64+e}, v{64+e}, v{80+e}")
            a(f"v_add_f32 v{96+e}, v{96+e}, v{112+e}")
        for r in range(4):
            e = q * 4 + r
            a(f"v_add_f32 v{64+e}, v{64+e}, v{96+e}")
        a(f"v_cvt_pk_bf16_f32 v{64+q*4}, v{64+q*4}, v{65+q*4}")
        a(f"v_cvt_pk_bf16_f32 v{65+q*4}, v{66+q*4}, v{67+q*4}")
        a(f"buffer_store_dwordx2 {vr(64+q*4,2)}, v{t0}, {srd(S_OUT)}, s{sT0} offen offset:{q*32}")
    return L

def kernel_wrap(name, body):
    L = [f".globl {name}", ".p2align 8", f".type {name},@function", f"{name}:"]
    L += body
    L += ["s_waitcnt vmcnt(0)", "s_endpgm"]
    return L

def desc(name):
    return [".p2align 6", f".amdhsa_kernel {name}", "  .amdhsa_next_free_vgpr 512", "  .amdhsa_next_free_sgpr 102",
            "  .amdhsa_accum_offset 256", "  .amdhsa_group_segment_fixed_size 0", "  .amdhsa_kernarg_size 112",
            "  .amdhsa_user_sgpr_count 2", "  .amdhsa_user_sgpr_kernarg_segment_ptr 1",
            "  .amdhsa_system_sgpr_workgroup_id_x 1", ".end_amdhsa_kernel"]

def fmt(L):
    out = []
    for l in L:
        if l.endswith(':') or l.startswith('.') or l.startswith(';') or l.startswith('  .'): out.append(l)
        else: out.append("    " + l)
    return "\n".join(out) + "\n"

def build(kernels, path):
    hdr = [f"; @launch kernel={n} grid=(256,1,1) block=(256,1,1) lds=163840" for n, _ in kernels]
    L = hdr + ['.amdgcn_target "amdgcn-amd-amdhsa--gfx950"', ".text"]
    for n, body in kernels: L += kernel_wrap(n, body)
    L += ['.section .rodata,"a"']
    for n, _ in kernels: L += desc(n)
    open(path, "w").write(fmt(L))

if __name__ == "__main__":
    STAMPS = "--stamps" in sys.argv
    k1 = setup_common("k1") + gen_A1("k1") + stamp_flush()
    for pr in check(k1, "k1-linear"): print(pr, file=sys.stderr)
    k3 = setup_common("k3") + gen_C("k3") + stamp_flush()
    for pr in check(k3, "k3-linear"): print(pr, file=sys.stderr)
    a2 = setup_common("k2") + gen_A2("k2")
    for pr in check(a2, "k2-linear"): print(pr, file=sys.stderr)
    k2 = a2 + gen_B("k2") + stamp_flush()
    which = sys.argv[2] if len(sys.argv) > 2 else "123"
    ks = []
    if "1" in which: ks.append(("kv_kernel", k1))
    if "2" in which: ks.append(("attn_kernel", k2))
    if "3" in which: ks.append(("out_kernel", k3))
    build(ks, sys.argv[1] if len(sys.argv) > 1 else "out.s")
```
